```python
import torch

def _softmax(x, axis=-1):
    return torch.softmax(x, dim=axis)
def _gelu(x):
    return torch.nn.functional.gelu(x, approximate="tanh")
def _silu(x):
    return torch.nn.functional.silu(x)
def _sigmoid(x):
    return torch.sigmoid(x)
def _layernorm(x, axis=-1, eps=1e-5):
    m = x.mean(dim=axis, keepdim=True)
    v = x.var(dim=axis, keepdim=True, unbiased=False)
    return (x - m) / torch.sqrt(v + eps)
def _scatter_add(tgt, idx, src, axis=0):
    return tgt.clone().index_add_(axis, idx, src)
def _segment_sum(src, seg, n):
    out = torch.zeros((n,) + src.shape[1:], dtype=src.dtype)
    return out.index_add_(0, seg, src)
def _pad(x, pw):
    flat = tuple(v for pair in reversed(pw) for v in pair)
    return torch.nn.functional.pad(x, flat)

kernel_name = 'standalone__gqa_softmax__prompt'

def setup_inputs():

    _w = (lambda a: (lambda t: t.to(torch.bfloat16) if t.is_floating_point() else t)(torch.as_tensor(a)))
    B, Hq, Hkv, Sq, Sk, D = 1, 32, 4, 2048, 2048, 128
    return {
        "q": _w((lambda *s: torch.randn(*s, dtype=torch.bfloat16) * 0.8)(B, Hq, Sq, D)),
        "k": _w((lambda *s: torch.randn(*s, dtype=torch.bfloat16) * 0.8)(B, Hkv, Sk, D)),
        "v": _w((lambda *s: torch.randn(*s, dtype=torch.bfloat16) * 0.05)(B, Hkv, Sk, D)),
    }

def reference(q, k, v):
    B, Hq, Sq, D = q.shape
    Hkv = k.shape[1]
    rep = Hq // Hkv
    k = (lambda x, n, axis: torch.repeat_interleave(x, n, dim=axis))(k, rep, axis=1)
    v = (lambda x, n, axis: torch.repeat_interleave(x, n, dim=axis))(v, rep, axis=1)
    scale = D ** -0.5
    scores = torch.einsum("bhqd,bhkd->bhqk", q, k) * scale
    p = _softmax(scores, axis=-1)
    return torch.einsum("bhqk,bhkd->bhqd", p, v)
```

```python
import sys
HEAD = """; @launch grid=({grid},1,1) block=({block},1,1) lds={lds}
; NMFMA={nm}
.amdgcn_target "amdgcn-amd-amdhsa--gfx950"
.text
.globl mb_kernel
.p2align 8
.type mb_kernel,@function
mb_kernel:
  s_load_dwordx2 s[4:5], s[0:1], 0
  s_load_dwordx2 s[6:7], s[0:1], 40
  s_waitcnt lgkmcnt(0)
  s_mov_b32 s8, s4
  s_mov_b32 s9, s5
  s_mov_b32 s10, 0x1000000
  s_mov_b32 s11, 0x20000
  s_mov_b32 s12, s6
  s_mov_b32 s13, s7
  s_mov_b32 s14, 0x100000
  s_mov_b32 s15, 0x20000
  v_lshlrev_b32 v250, 4, v0
  s_lshl_b32 s3, s2, 14
  v_add_u32 v251, s3, v250
"""
TAIL = """
  s_endpgm
.section .rodata,"a"
.p2align 6
.amdhsa_kernel mb_kernel
  .amdhsa_next_free_vgpr {nfv}
  .amdhsa_next_free_sgpr 102
  .amdhsa_accum_offset {acc}
  .amdhsa_group_segment_fixed_size 0
  .amdhsa_kernarg_size 48
  .amdhsa_user_sgpr_count 2
  .amdhsa_user_sgpr_kernarg_segment_ptr 1
  .amdhsa_system_sgpr_workgroup_id_x 1
.end_amdhsa_kernel
"""
def make(name, body, iters, nm_per_iter, grid=256, block=256, lds=65536, nfv=512, acc=256, nv=128, na=None):
    s = HEAD.format(grid=grid, block=block, lds=lds, nm=iters * nm_per_iter)
    na = (nfv - acc) if na is None else na
    for i in range(0, nv, 4):
        s += f"  buffer_load_dwordx4 v[{i}:{i+3}], v251, s[8:11], 0 offen offset:{(i*64)%4096}\n"
    s += "  s_waitcnt vmcnt(0)\n"
    for i in range(0, 64, 4):
        s += f"  ds_write_b128 v250, v[{i}:{i+3}] offset:{(i//4)*4096}\n"
    s += "  s_waitcnt lgkmcnt(0)\n  s_barrier\n"
    for i in range(0, na):
        s += f"  v_accvgpr_write_b32 a{i}, v{(i*7)%nv}\n"
    for i in range(0, min(128, na)):
        s += f"  v_accvgpr_write_b32 a{i}, 0\n"
    for i in range(0, 64):
        s += f"  v_mov_b32 v{i}, 0\n"
    for i in range(96, 128):
        s += f"  v_mov_b32 v{i}, -4.0\n"
    s += "  v_and_b32 v249, 0x3f0, v250\n"
    s += "  v_lshrrev_b32 v248, 1, v249\n"
    s += f"  s_mov_b32 s20, {iters}\n"
    s += "  s_barrier\n  s_memtime s[24:25]\n  s_memrealtime s[26:27]\n  s_waitcnt lgkmcnt(0)\n"
    s += ".p2align 6\nL_loop:\n"
    s += body
    s += "  s_sub_u32 s20, s20, 1\n  s_cmp_lg_u32 s20, 0\n  s_cbranch_scc1 L_loop\n"
    s += "  s_waitcnt lgkmcnt(0) vmcnt(0)\n  s_memtime s[28:29]\n  s_memrealtime s[30:31]\n  s_waitcnt lgkmcnt(0)\n"
    s += "  s_sub_u32 s28, s28, s24\n  s_sub_u32 s30, s30, s26\n"
    s += "  v_mov_b32 v4, s28\n  v_mov_b32 v5, s30\n  v_mov_b32 v6, 0\n  v_mov_b32 v7, 0\n"
    s += f"  v_lshrrev_b32 v1, 10, v250\n  s_mul_i32 s3, s2, {block//64}\n  v_add_u32 v1, s3, v1\n  v_lshlrev_b32 v1, 4, v1\n"
    s += "  v_and_b32 v2, 0x3f0, v250\n  v_cmp_eq_u32 vcc, 0, v2\n  s_and_saveexec_b64 s[32:33], vcc\n"
    s += "  buffer_store_dwordx4 v[4:7], v1, s[12:15], 0 offen\n  s_waitcnt vmcnt(0)\n"
    s += TAIL.format(nfv=nfv, acc=acc)
    open(name, "w").write(s)

def period(fill, shape=32):
    s = ""
    for i in range(32):
        if i < 16:
            dd, qb = i // 2, i % 2
            d = 32 + qb * 16
            c = f"v[{96+qb*16}:{96+qb*16+15}]" if dd == 0 else f"v[{d}:{d+15}]"
            s += f"  v_mfma_f32_32x32x16_bf16 v[{d}:{d+15}], a[{192+dd*4}:{195+dd*4}], a[{128+qb*32+dd*4}:{131+qb*32+dd*4}], {c}\n"
        else:
            j = i - 16
            kk, db, qb = j // 8, (j // 2) % 4, j % 2
            o = (db * 2 + qb) * 16
            f = kk * 4 + db
            s += f"  v_mfma_f32_32x32x16_bf16 a[{o}:{o+15}], a[{224+f*4}:{227+f*4}], v[{64+qb*8+kk*4}:{67+qb*8+kk*4}], a[{o}:{o+15}]\n"
        for x in fill(i):
            s += "  " + x + "\n"
    return s

def exp(i): return f"v_exp_f32 v{130+i%4}, v{i}"
def add(i): return f"v_add_f32 v140, v140, v{130+(i-1)%4}"
def cvt(i): return f"v_cvt_pk_bf16_f32 v{80+i//2}, v{130+(i-2)%4}, v{130+(i-1)%4}"
def fma(i): return f"v_fma_f32 v{144+i%4}, v{i}, s21, v141"
def ldsk(j): return f"ds_read_b128 a[{192+j*4}:{195+j*4}], v249 offset:{j*1024}"
def ldsv(j): return f"ds_read_b64_tr_b16 a[{224+j*2}:{225+j*2}], v248 offset:{8192+j*512}"

if __name__ == "__main__":
    IT = 64
    make("m0_bare.s", period(lambda i: []), IT, 32)
    make("m1_exp.s", period(lambda i: [exp(i)]), IT, 32)
    make("m2_sm.s", period(lambda i: [exp(i), add(i)] + ([cvt(i)] if i % 2 else [])), IT, 32)
    def f3(i):
        r = []
        if i < 16: r.append(ldsv(i))
        elif i < 24: r.append(ldsk(i - 16))
        r += [exp(i), add(i)] + ([cvt(i)] if i % 2 else [])
        if i in (15, 31): r.append("s_waitcnt lgkmcnt(0)")
        return r
    make("m3_sm_lds.s", period(f3), IT, 32)
    def f4(i):
        r = f3(i)
        r.insert(1, fma(i))
        return r
    make("m4_sm_lds_fma.s", period(f4), IT, 32)
    def f5(i):
        r = f3(i)
        r.append("s_add_u32 s22, s22, 1")
        return r
    make("m5_sm_lds_salu.s", period(f5), IT, 32)
    def f6(i):
        r = f4(i)
        r.append("s_add_u32 s22, s22, 1")
        return r
    make("m6_sm_lds_fma_salu.s", period(f6), IT, 32)
    for n in (4, 5, 6, 7, 8):
        make(f"m7_add{n}.s", period(lambda i: [f"v_add_f32 v{140+t}, v{140+t}, v{130+t}" for t in range(n)]), IT, 32)
    for n in (5, 6, 7, 8):
        make(f"m8_salu{n}.s", period(lambda i: [f"s_add_u32 s{40+t}, s{40+t}, 1" for t in range(n)]), IT, 32)
    for n in (1, 2):
        make(f"m9_add6_salu{n}.s", period(lambda i: [f"s_add_u32 s{40+t}, s{40+t}, 1" for t in range(n)] + [f"v_add_f32 v{140+t}, v{140+t}, v{130+t}" for t in range(6)]), IT, 32)
    make("m10_exp3.s", period(lambda i: [f"v_exp_f32 v{130+t}, v{t}" for t in range(3)]), IT, 32)
    make("m11_exp3_salu3.s", period(lambda i: sum([[f"v_exp_f32 v{130+t}, v{t}", f"s_add_u32 s{40+t}, s{40+t}, 1"] for t in range(3)], [])), IT, 32)
    make("m12_salu_exp3_salu3.s", period(lambda i: ["s_add_u32 s44, s44, 1"] + sum([[f"v_exp_f32 v{130+t}, v{t}", f"s_add_u32 s{40+t}, s{40+t}, 1"] for t in range(3)], [])), IT, 32)
```

```python
import genmb
from genmb import HEAD, TAIL

def make(name, body, iters, nm_per_iter, grid=256, block=256, lds=65536, nfv=512, acc=256, trace=False, zero=False):
    s = HEAD.format(grid=grid, block=block, lds=lds, nm=iters * nm_per_iter)
    nv = 232
    for i in range(0, nv, 4):
        s += f"  buffer_load_dwordx4 v[{i}:{i+3}], v251, s[8:11], 0 offen offset:{(i*64)%4096}\n"
        if i % 64 == 60: s += "  v_add_u32 v251, 0x400000, v251\n"
    s += "  s_waitcnt vmcnt(0)\n"
    for i in range(0, 64, 4):
        s += f"  ds_write_b128 v250, v[{i}:{i+3}] offset:{(i//4)*4096}\n"
    s += "  s_waitcnt lgkmcnt(0)\n  s_barrier\n"
    for i in range(128, 256):
        src = i - 128 + 64
        sc = "0x3e029464" if i < 192 else ("1.0" if i < 224 else "0x3d800000")
        s += f"  v_lshlrev_b32 v240, 16, v{src}\n  v_and_b32 v241, 0xffff0000, v{src}\n"
        s += f"  v_mul_f32 v240, {sc}, v240\n  v_mul_f32 v241, {sc}, v241\n  v_cvt_pk_bf16_f32 v240, v240, v241\n"
        if zero: s += "  v_mov_b32 v240, 0\n"
        s += f"  v_accvgpr_write_b32 a{i}, v240\n"
    for i in range(0, 128):
        s += f"  v_accvgpr_write_b32 a{i}, 0\n"
    for i in range(0, 64):
        s += f"  v_and_b32 v{i}, 0xfffffff0, v{i}\n  v_add_f32 v{i}, -2.0, v{i}\n"
    for i in range(0, 32):
        s += f"  v_exp_f32 v240, v{2*i}\n  v_exp_f32 v241, v{2*i+1}\n  s_nop 0\n  v_cvt_pk_bf16_f32 v{64+i}, v240, v241\n"
        if zero: s += f"  v_mov_b32 v{64+i}, 0\n"
    for i in range(96, 128):
        s += f"  v_mov_b32 v{i}, -4.0\n"
    s += "  v_and_b32 v249, 0x3f0, v250\n  v_lshrrev_b32 v248, 1, v249\n"
    s += f"  s_mov_b32 s20, {iters}\n"
    s += f"  v_lshrrev_b32 v247, 10, v250\n  s_mul_i32 s3, s2, {block//64}\n  v_add_u32 v247, s3, v247\n"
    if trace:
        s += "  v_lshlrev_b32 v246, 12, v247\n  v_add_u32 v246, 0x10000, v246\n  s_mov_b32 s14, 0x1000000\n"
    s += "  v_lshlrev_b32 v247, 4, v247\n"
    s += "  s_barrier\n  s_memtime s[24:25]\n  s_memrealtime s[26:27]\n  s_waitcnt lgkmcnt(0)\n"
    s += ".p2align 6\nL_loop:\n"
    if trace:
        s += "  s_memtime s[34:35]\n  s_memrealtime s[36:37]\n"
    s += body
    if trace:
        s += "  s_waitcnt lgkmcnt(0)\n  v_mov_b32 v244, s34\n  v_mov_b32 v245, s36\n  buffer_store_dwordx2 v[244:245], v246, s[12:15], 0 offen\n  v_add_u32 v246, 8, v246\n"
    s += "  s_sub_u32 s20, s20, 1\n  s_cmp_lg_u32 s20, 0\n  s_cbranch_scc1 L_loop\n"
    s += "  s_waitcnt lgkmcnt(0) vmcnt(0)\n  s_memtime s[28:29]\n  s_memrealtime s[30:31]\n  s_waitcnt lgkmcnt(0)\n"
    s += "  s_sub_u32 s28, s28, s24\n  s_sub_u32 s30, s30, s26\n"
    s += "  v_mov_b32 v4, s28\n  v_mov_b32 v5, s30\n  v_mov_b32 v6, 0\n  v_mov_b32 v7, 0\n"
    s += "  v_and_b32 v2, 0x3f0, v250\n  v_cmp_eq_u32 vcc, 0, v2\n  s_and_saveexec_b64 s[32:33], vcc\n"
    s += "  buffer_store_dwordx4 v[4:7], v247, s[12:15], 0 offen\n  s_waitcnt vmcnt(0)\n"
    s += TAIL.format(nfv=nfv, acc=acc)
    open(name, "w").write(s)

def mf32_list(qk="inter", pv="inter"):
    L = []
    for i in range(16):
        if qk == "inter": dd, qb = i // 2, i % 2
        else: qb, dd = i // 8, i % 8
        d = 128 + qb * 16
        c = f"v[{96+qb*16}:{96+qb*16+15}]" if dd == 0 else f"v[{d}:{d+15}]"
        L.append(f"v_mfma_f32_32x32x16_bf16 v[{d}:{d+15}], a[{192+dd*4}:{195+dd*4}], a[{128+qb*32+dd*4}:{131+qb*32+dd*4}], {c}")
    for j in range(16):
        if pv == "inter": kk, db, qb = j // 8, (j // 2) % 4, j % 2
        elif pv == "chain": db, qb, kk = j // 4, (j // 2) % 2, j % 2
        elif pv == "chainq": qb, db, kk = j // 8, (j // 2) % 4, j % 2
        elif pv == "chain4":
            db, qb, kk = (j // 4), 0, j % 2
            qb = (j // 2) % 2
            o = (db * 2) * 16
            f = kk * 4 + db
            L.append(f"v_mfma_f32_32x32x16_bf16 a[{o}:{o+15}], a[{224+f*4}:{227+f*4}], v[{64+qb*8+kk*4}:{67+qb*8+kk*4}], a[{o}:{o+15}]")
            continue
        o = (db * 2 + qb) * 16
        f = kk * 4 + db
        L.append(f"v_mfma_f32_32x32x16_bf16 a[{o}:{o+15}], a[{224+f*4}:{227+f*4}], v[{64+qb*8+kk*4}:{67+qb*8+kk*4}], a[{o}:{o+15}]")
    return L

def mf16_list(qk="Astat", pv="Astat"):
    L = []
    for i in range(32):
        if qk == "Astat": kb, dd, qb = i // 16, (i // 4) % 4, i % 4
        elif qk == "Bstat": dd, qb, kb = i // 8, (i // 2) % 4, i % 2
        else: kb, qb, dd = i // 16, (i // 4) % 4, i % 4
        d = 128 + (kb * 4 + qb) * 4
        c = f"v[{96+qb*4}:{96+qb*4+3}]" if dd == 0 else f"v[{d}:{d+3}]"
        f = kb * 4 + dd
        L.append(f"v_mfma_f32_16x16x32_bf16 v[{d}:{d+3}], a[{192+f*4}:{195+f*4}], a[{128+qb*16+dd*4}:{131+qb*16+dd*4}], {c}")
    for j in range(32):
        if pv == "Astat": db, qb = j // 4, j % 4; o = (db * 4 + qb) * 4
        elif pv == "Bstat": qb, db = j // 8, j % 8; o = (db * 4 + qb) * 4
        elif pv == "chain2":
            db, qb = j % 8, (j * 3 + j // 8) % 4; o = (j // 2) * 4
        elif pv == "chain4":
            db, qb = j % 8, (j * 3 + j // 8) % 4; o = (j // 4) * 4
        L.append(f"v_mfma_f32_16x16x32_bf16 a[{o}:{o+3}], a[{224+db*4}:{227+db*4}], v[{64+qb*4}:{67+qb*4}], a[{o}:{o+3}]")
    return L

def body(L, fill=lambda i: []):
    s = ""
    for i, m in enumerate(L):
        s += "  " + m + "\n"
        for x in fill(i): s += "  " + x + "\n"
    return s

if __name__ == "__main__":
    IT = 64
    make("p0_32_inter.s", body(mf32_list()), IT, 32)
    make("p1_32_chain.s", body(mf32_list("chain", "chain")), IT, 32)
    make("p1_32_chainq.s", body(mf32_list("chain", "chainq")), IT, 32)
    make("p2_32_chain4.s", body(mf32_list("chain", "chain4")), IT, 32)
    make("p3_16_A.s", body(mf16_list()), IT, 32)
    make("p3_16_B.s", body(mf16_list("Bstat", "Bstat")), IT, 32)
    make("p4_16_chainA.s", body(mf16_list("chain", "Astat")), IT, 32)
    make("p4_16_chainB.s", body(mf16_list("chain", "Bstat")), IT, 32)
    make("p5_16_chain2.s", body(mf16_list("chain", "chain2")), IT, 32)
    make("p5_16_chain4.s", body(mf16_list("chain", "chain4")), IT, 32)
    make("p6_32_zero.s", body(mf32_list()), IT, 32, zero=True)
    make("p7_32_trace.s", body(mf32_list()), 256, 32, trace=True)
    make("p8_32_qk.s", body(mf32_list()[:16] * 2), IT, 32)
    make("p8_32_pv.s", body(mf32_list()[16:] * 2), IT, 32)
    make("p8_16_qk.s", body(mf16_list()[:32] * 2), IT, 32)
    make("p8_16_pv.s", body(mf16_list()[32:] * 2), IT, 32)
```

```python
from genmb3 import make, mf16_list, mf32_list, body
IT = 64
ops = {
 "add": lambda i, t: f"v_add_f32 v{160+(i*3+t)%8}, v{160+(i*3+t)%8}, v{170+(i+t+3)%8}",
 "exp": lambda i, t: f"v_exp_f32 v{170+(i//2)%8}, v{(i//2+t*7)%64}",
 "cvt": lambda i, t: f"v_cvt_pk_bf16_f32 v{180+(i//4)%8}, v{170+(i+t+3)%8}, v{170+(i+t+4)%8}",
 "or3": lambda i, t: f"v_or3_b32 v{190}, v{190}, v{180+(i+t+3)%8}, v{180+(i+t+4)%8}",
 "sal": lambda i, t: f"s_add_u32 s{40+t}, s{40+t}, 1",
 "tr": lambda i, t: f"ds_read_b64_tr_b16 v[{212+((i*3+t)%4)*2}:{213+((i*3+t)%4)*2}], v248 offset:{8192+((i*3+t)%16)*512}",
 "b128": lambda i, t: f"ds_read_b128 v[{220+((i*3+t)%2)*4}:{223+((i*3+t)%2)*4}], v249 offset:{((i*3+t)%8)*1024}",
 "dma": lambda i, t: f"buffer_load_dwordx4 v249, s[8:11], s44 offen offset:{(i%4)*1024} lds",
 "nop": lambda i, t: "s_nop 0",
 "smf": lambda i, t: f"v_smfmac_f32_16x16x64_bf16 v[{232+(i%2)*4}:{235+(i%2)*4}], v[228:231], v[{64+(i%2)*8}:{71+(i%2)*8}], v211",
 "one": lambda i, t: f"v_mfma_f32_16x16x32_bf16 v[{232+(i%2)*4}:{235+(i%2)*4}], v[228:231], v[{64+(i%4)*4}:{67+(i%4)*4}], v[{232+(i%2)*4}:{235+(i%2)*4}]",
}
PRE = "  s_mov_b32 m0, 0x8000\n  s_mov_b32 s44, 0\n"
names = []
def mk(shape, pats, nm=None, pre=""):
    L = mf16_list("chain", "Astat") if shape == 16 else mf32_list()
    nm = nm or ("r%d_" % shape + "__".join("_".join(p) for p in pats) + ".s")
    make(nm, body(L, lambda i: [ops[o](i, t) for t, o in enumerate(pats[i % len(pats)])]), IT, 32)
    s = open(nm).read()
    init = "  s_mov_b32 m0, 0x8000\n  s_mov_b32 s44, 0\n" + "".join(f"  v_mov_b32 v{r}, 0x3f803f80\n" for r in range(228, 232)) + "".join(f"  v_mov_b32 v{r}, 0\n" for r in range(232, 240)) + "  v_mov_b32 v211, 0x44444444\n"
    s = s.replace("  s_barrier\n  s_memtime s[24:25]", init + "  s_barrier\n  s_memtime s[24:25]")
    open(nm, "w").write(s)
    names.append(nm)
mk(16, [["tr", "tr"]])
mk(16, [["tr"]])
mk(16, [["tr", "tr"], ["exp"]])
mk(16, [["tr", "cvt"], ["exp"]])
mk(16, [["exp"], ["add", "cvt"], ["exp"], ["add"]])
mk(16, [["exp"], ["add", "cvt"], ["exp"], ["tr", "add"]])
mk(16, [["exp"], ["add", "cvt"], ["exp"], ["b128", "add"]])
mk(16, [["sal", "exp"], ["sal", "add", "cvt"], ["sal", "exp"], ["tr", "add"]])
def full_add():
    P = []
    for i in range(64):
        if i % 2 == 0: p = ["exp"]
        elif i % 4 == 1: p = ["add", "cvt"]
        else: p = ["tr" if i < 32 else "b128", "add"]
        if i < 32 and i % 4 == 1: p = ["tr"] + p
        if i >= 32 and i % 8 == 1: p = ["dma"] + p
        if i in (37, 45, 53): p = p + ["add"]
        if i in (30, 62): p = ["sal"] + p
        P.append(p)
    return P
mk(16, full_add(), "r16_full_add.s")
def full_add2():
    P = []
    for i in range(64):
        if i % 2 == 0: p = ["exp"]
        elif i % 4 == 1: p = ["add", "cvt"]
        else: p = ["tr", "tr", "add"] if i < 32 else ["b128", "add"]
        if i >= 32 and i % 8 == 1: p = ["dma"] + p
        if i in (37, 45, 53): p = p + ["add"]
        P.append(p)
    return P
mk(16, full_add2(), "r16_full_add2.s")
def full_or(kind):
    P = []
    for i in range(64):
        if i % 2 == 0: p = ["exp"]
        elif i < 32: p = ["tr", "cvt" if i % 4 == 1 else "or3"] if True else []
        else:
            if i % 4 == 1: p = ["b128", "cvt"]
            elif i % 8 == 3: p = ["dma", "or3"]
            else: p = ["add"]
        P.append(p)
    if kind == "one":
        for i in (39, 47, 55, 63): P[i] = P[i] + ["one"]
    elif kind == "smf":
        for i in (47, 63): P[i] = P[i] + ["smf"]
    return P
mk(16, full_or("none"), "r16_full_or_none.s")
mk(16, full_or("one"), "r16_full_or_one.s")
mk(16, full_or("smf"), "r16_full_or_smf.s")
def full32():
    P = []
    for i in range(32):
        p = ["exp", "add"] + (["cvt"] if i % 2 else [])
        if i < 16: p = ["tr"] + p
        elif i % 2 == 0: p = ["b128"] + p
        elif i % 4 == 1: p = ["dma"] + p
        if i in (19, 23, 27): p = p + ["add"]
        P.append(p)
    return P
ops32 = dict(ops)
ops["exp"] = lambda i, t: f"v_exp_f32 v{170+(i)%8}, v{(i+t*7)%64}"
mk(32, full32(), "r32_full.s")
open("r_list.txt", "w").write(" ".join(names))
```
